```python
import torch

def _softmax(x, axis=-1):
    return torch.softmax(x, dim=axis)
def _gelu(x):
    return torch.nn.functional.gelu(x, approximate="tanh")
def _silu(x):
    return torch.nn.functional.silu(x)
def _sigmoid(x):
    return torch.sigmoid(x)
def _layernorm(x, axis=-1, eps=1e-5):
    m = x.mean(dim=axis, keepdim=True)
    v = x.var(dim=axis, keepdim=True, unbiased=False)
    return (x - m) / torch.sqrt(v + eps)
def _scatter_add(tgt, idx, src, axis=0):
    return tgt.clone().index_add_(axis, idx, src)
def _segment_sum(src, seg, n):
    out = torch.zeros((n,) + src.shape[1:], dtype=src.dtype)
    return out.index_add_(0, seg, src)
def _pad(x, pw):
    flat = tuple(v for pair in reversed(pw) for v in pair)
    return torch.nn.functional.pad(x, flat)

kernel_name = 'sequential_preLN__softmax_full_mha__dense_activation_squared_relu__prompt'

def setup_inputs():

    _w = (lambda a: (lambda t: t.to(torch.bfloat16) if t.is_floating_point() else t)(torch.as_tensor(a)))
    def _A_setup():
        B, S, D = 1, 2048, 448
        return {
            "x": _w((lambda *s: torch.randn(*s, dtype=torch.bfloat16) * 0.05)(B, S, D)),
            "wqkv": _w((lambda *s: torch.randn(*s, dtype=torch.bfloat16) * 0.05)(D, 3 * D)),
            "wo": _w((lambda *s: torch.randn(*s, dtype=torch.bfloat16) * 0.05)(D, D)),
        }
    _A_in = _A_setup()

    def _B_setup():
        B, S, D, F = 1, 2048, 448, 1792
        return {
            "x": _w((lambda *s: torch.randn(*s, dtype=torch.bfloat16) * 0.05)(B, S, D)),
            "w1": _w((lambda *s: torch.randn(*s, dtype=torch.bfloat16) * 0.05)(D, F)),
            "b1": _w((lambda *s: torch.randn(*s, dtype=torch.bfloat16) * 0.2)(F)),
            "w2": _w((lambda *s: torch.randn(*s, dtype=torch.bfloat16) * 0.05)(F, D)),
            "b2": _w((lambda *s: torch.randn(*s, dtype=torch.bfloat16) * 0.8)(D)),
        }
    _B_in = _B_setup()

    return {
        "A_x": _A_in["x"],
        "A_wqkv": _A_in["wqkv"],
        "A_wo": _A_in["wo"],
        "B_x": _B_in["x"],
        "B_w1": _B_in["w1"],
        "B_b1": _B_in["b1"],
        "B_w2": _B_in["w2"],
        "B_b2": _B_in["b2"],
    }

def reference(A_x, A_wqkv, A_wo, B_x, B_w1, B_b1, B_w2, B_b2):
    def _A_ref(x, wqkv, wo):
        B, S, D = x.shape
        H = 16; Dh = D // H
        qkv = (lambda x, *d: x.permute(*d))((x @ wqkv).reshape(B, S, 3, H, Dh), 2, 0, 3, 1, 4)
        q, k, v = qkv[0], qkv[1], qkv[2]
        scale = Dh ** -0.5
        scores = torch.einsum("bhqd,bhkd->bhqk", q, k) * scale
        p = _softmax(scores, axis=-1)
        o = torch.einsum("bhqk,bhkd->bhqd", p, v)
        return (lambda x, *d: x.permute(*d))(o, 0, 2, 1, 3).reshape(B, S, D) @ wo

    def _B_ref(x, w1, b1, w2, b2):
        h = torch.einsum("bsd,df->bsf", x, w1) + b1
        zero = torch.zeros_like(h)
        r = torch.where(h > zero, h, zero)
        h = r * r
        out = torch.einsum("bsf,fd->bsd", h, w2) + b2
        return out

    x = A_x
    h = x + _A_ref(_layernorm(x, axis=-1), A_wqkv, A_wo)
    h2 = h + _B_ref(_layernorm(h, axis=-1), B_w1, B_b1, B_w2, B_b2)
    return h2
```

```python
import re

TRANS = ("v_exp_f32","v_log_f32","v_rcp_f32","v_rsq_f32","v_sqrt_f32","v_sin_f32","v_cos_f32","v_exp_f16","v_rcp_iflag_f32")

def regs_of(tok):
    t = tok.strip()
    t = re.sub(r"^(neg|abs|sext)\((.*)\)$", r"\2", t)
    t = t.lstrip("-").strip("|")
    m = re.fullmatch(r"([vsa])(\d+)", t)
    if m: return [(m.group(1), int(m.group(2)))]
    m = re.fullmatch(r"([vsa])\[(\d+):(\d+)\]", t)
    if m: return [(m.group(1), i) for i in range(int(m.group(2)), int(m.group(3))+1)]
    if t == "vcc": return [("s",106),("s",107)]
    if t == "vcc_lo": return [("s",106)]
    if t == "vcc_hi": return [("s",107)]
    if t == "exec": return [("s",126),("s",127)]
    if t == "exec_lo": return [("s",126)]
    if t == "exec_hi": return [("s",127)]
    if t == "m0": return [("s",124)]
    return []

class Ins:
    def __init__(self, text):
        self.text = text.strip()
        self.label = None
        self.nops = 0
        code = self.text.split(";")[0].strip()
        self.code = code
        if code.endswith(":"):
            self.label = code[:-1]; self.op = "label"; self.ops = []; self.rd=[]; self.wr=[]; self.cls="label"; return
        if code.startswith(".") or code == "":
            self.op = "dir"; self.ops=[]; self.rd=[]; self.wr=[]; self.cls="dir"; return
        parts = code.split(None, 1)
        self.op = re.sub(r"_(e32|e64)$", "", parts[0])
        rest = parts[1] if len(parts) > 1 else ""
        ops = []; depth=0; cur=""
        for ch in rest:
            if ch in "[(": depth+=1
            if ch in "])": depth-=1
            if ch == "," and depth==0: ops.append(cur.strip()); cur=""
            else: cur += ch
        if cur.strip(): ops.append(cur.strip())
        self.mods = ""
        if ops:
            lp = ops[-1].split()
            ops[-1] = lp[0]; self.mods = " ".join(lp[1:])
        self.ops = ops
        self.classify()

    def classify(self):
        op = self.op; ops = self.ops
        R = lambda i: regs_of(ops[i]) if i < len(ops) else []
        allr = lambda a: [r for i in range(a, len(ops)) for r in R(i)]
        self.rd=[]; self.wr=[]; self.cls="other"; self.passes=0
        self.srcC=[]; self.srcAB=[]
        self.vm=False; self.lg=False; self.store_data=[]; self.ldsdma=False
        if op.startswith("v_mfma"):
            self.cls="mfma"; self.wr=R(0); self.srcAB=R(1)+R(2); self.srcC=R(3); self.rd=self.srcAB+self.srcC
            self.passes = 8 if "32x32" in op else 4
        elif op.startswith("v_cmp"):
            self.cls="valu"; self.wr=R(0); self.rd=allr(1)
            if op.startswith("v_cmpx"): raise Exception("no cmpx")
        elif op in ("v_readfirstlane_b32","v_readlane_b32"):
            self.cls="valu"; self.wr=R(0); self.rd=allr(1)
        elif op.startswith("v_permlane") and "swap" in op:
            self.cls="valu"; self.wr=R(0)+R(1); self.rd=R(0)+R(1)
        elif op.startswith("v_"):
            self.cls="valu"; self.wr=R(0); self.rd=allr(1)
            if op in ("v_add_co_u32","v_sub_co_u32","v_addc_co_u32","v_subb_co_u32","v_subrev_co_u32"):
                self.wr=R(0)+R(1); self.rd=allr(2)
            if op.startswith("v_fmac") or op.startswith("v_dot2c") or op.startswith("v_pk_fmac") or op=="v_writelane_b32" or "UNUSED_PRESERVE" in self.mods:
                self.rd=self.rd+R(0)
            if op=="v_cndmask_b32" and len(ops)==3: self.rd += regs_of("vcc")
        elif op.startswith("ds_"):
            self.cls="ds"; self.lg=True
            if op.startswith("ds_read") or op.startswith("ds_bpermute") or op.startswith("ds_permute") or op.startswith("ds_swizzle") or "_rtn" in op:
                self.wr=R(0); self.rd=allr(1)
            else:
                self.rd=allr(0)
            if "addtid" in op: self.rd += [("s",124)]
        elif op.startswith("buffer_") or op.startswith("global_") or op.startswith("flat_"):
            self.cls="vmem"; self.vm=True
            if op.startswith("buffer_inv") or op.startswith("buffer_wbl2"):
                pass
            elif "load" in op and (" lds" in " "+self.mods or "_lds_" in op):
                self.ldsdma=True; self.rd=allr(0)+[("s",124)]
            elif "load" in op:
                self.wr=R(0); self.rd=allr(1)
            elif "store" in op:
                self.rd=allr(0)
                if op.startswith("buffer"): self.store_data=R(0)
                else: self.store_data=R(1)
                if not (op.endswith("x3") or op.endswith("x4")): self.store_data=[]
            elif "atomic" in op:
                ret = "sc0" in self.mods.split()
                if op.startswith("buffer"):
                    self.rd=allr(0); self.wr = R(0) if ret else []
                else:
                    if ret: self.wr=R(0); self.rd=allr(1)
                    else: self.rd=allr(0)
        elif op.startswith("s_load") or op.startswith("s_buffer_load") or op.startswith("s_memtime") or op.startswith("s_memrealtime") or op.startswith("s_atomic"):
            self.cls="smem"; self.lg=True; self.wr=R(0); self.rd=allr(1)
        elif op.startswith("s_cbranch") or op=="s_branch":
            self.cls="branch"
            if "vcc" in op: self.rd=regs_of("vcc")
            if "exec" in op: self.rd=regs_of("exec")
        elif op in ("s_waitcnt","s_nop","s_barrier","s_endpgm","s_setprio","s_sleep","s_sethalt"):
            self.cls="ctl"
        elif op.startswith("s_cmp") or op.startswith("s_bitcmp"):
            self.cls="salu"; self.rd=allr(0)
        elif op.startswith("s_"):
            self.cls="salu"; self.wr=R(0); self.rd=allr(1)
            if "saveexec" in op: self.wr += regs_of("exec"); self.rd += regs_of("exec")
            if op in ("s_addk_i32","s_mulk_i32","s_cmov_b32","s_cmov_b64"): self.rd += R(0)
        else:
            raise Exception("unknown op " + self.text)
        self.trans = op in TRANS
        self.dl = op.startswith("v_dot")
        self.dpp = ("quad_perm" in self.mods or "row_" in self.mods or "wave_" in self.mods or op.endswith("_dpp"))
        self.sdwa = op.endswith("_sdwa") or "op_sel" in self.mods
        self.perml = op.startswith("v_permlane")
        self.rdlane = op in ("v_readfirstlane_b32","v_readlane_b32")

    def states(self):
        if self.cls in ("label","dir"): return 0
        if self.op == "s_nop": return int(self.ops[0],0)+1
        return 1

def need_states(I, st):
    need = 0
    def chk(kind, reg, n):
        nonlocal need
        a = st.get((kind, reg))
        if a is not None and n - a > need: need = n - a
    if I.cls == "mfma":
        for r in I.rd:
            chk("valu", r, 2); chk("dl", r, 3)
        for r in I.srcAB:
            chk("m8", r, 12); chk("m4", r, 8)
        for kind, p, n in (("m8",8,10),("m4",4,6)):
            for r in I.srcC:
                a = st.get((kind, r))
                if a is None: continue
                ex = st.get(("mD"+kind, r))
                ident = st.get(("id", r))
                if ident == (I.srcC[0], len(I.srcC), I.passes): continue
                if n - a > need: need = n - a
        for r in I.wr:
            if r not in I.srcC:
                ident = st.get(("id", r))
                for kind,n in (("m8",10),("m4",6)):
                    a = st.get((kind, r))
                    if a is not None and ident != (I.wr[0], len(I.wr), I.passes) and n-a>need: need=n-a
    if I.cls == "valu":
        for r in I.rd + I.wr:
            chk("m8", r, 12); chk("m4", r, 8)
        for r in I.wr:
            chk("c8", r, 7); chk("c4", r, 3); chk("st", r, 2)
        for r in I.rd:
            if not I.trans: chk("trans", r, 1)
            chk("sdwa", r, 1)
            if r[0]=="s": chk("vsg", r, 4 if I.op in ("v_readlane_b32","v_writelane_b32") else 2)
            if I.dpp: chk("valu", r, 2)
            if I.perml: chk("valu", r, 2)
            if I.rdlane and r[0]!="s": chk("valu", r, 1)
        for r in I.rd + I.wr:
            a = st.get(("dl", r))
            if a is not None:
                same = st.get(("dlop", r)) == I.op
                isC = I.dl and (r in I.wr) and same
                if not isC and 3-a>need: need=3-a
        for r in I.wr: chk("sdwa", r, 1)
    if I.cls in ("vmem","ds"):
        for r in I.rd + I.wr:
            chk("m8", r, 12); chk("m4", r, 8); chk("dl", r, 3)
        for r in I.wr: chk("st", r, 1)
        for r in I.rd:
            if r[0]=="s" and I.cls=="vmem": chk("vsg", r, 5)
            chk("trans", r, 1)
        if I.ldsdma or "addtid" in I.op: chk("m0", ("s",124), 1)
    if I.cls in ("salu","branch","smem"):
        for r in I.rd:
            chk("vsg", r, 1 if I.cls!="branch" else 1)
    return max(need,0)

def apply(I, st, extra):
    adv = I.states() + extra
    ns = {}
    for k,a in st.items():
        if k[0] in ("id","dlop"): ns[k]=a; continue
        a2 = a + adv
        if a2 <= 24: ns[k]=a2
    for k in list(ns):
        if k[0]=="id" and ("m8",k[1]) not in ns and ("m4",k[1]) not in ns: del ns[k]
        elif k[0]=="dlop" and ("dl",k[1]) not in ns: del ns[k]
    if I.cls=="valu":
        for r in I.wr:
            for kd in ("m8","m4","id","trans","dl","dlop","sdwa"): ns.pop((kd,r),None)
            if r[0]=="s": ns[("vsg",r)]=0
            else:
                ns[("valu",r)]=0
                if I.trans: ns[("trans",r)]=0
                if I.dl: ns[("dl",r)]=0; ns[("dlop",r)]=I.op
                if I.sdwa: ns[("sdwa",r)]=0
    elif I.cls=="mfma":
        kd = "m8" if I.passes==8 else "m4"
        for r in I.wr:
            ns.pop(("m8",r),None); ns.pop(("m4",r),None)
            ns[(kd,r)]=0; ns[("id",r)]=(I.wr[0],len(I.wr),I.passes)
        for r in I.srcC:
            ns[("c8" if I.passes==8 else "c4", r)]=0
    elif I.cls=="salu":
        for r in I.wr:
            ns.pop(("vsg",r),None)
            if r==("s",124): ns[("m0",r)]=0
    elif I.cls=="vmem":
        for r in I.store_data: ns[("st",r)]=0
    return ns

def join(a,b):
    out = dict(a)
    for k,v in b.items():
        if k[0] in ("id","dlop"):
            if k in out and out[k]!=v: out[k]=None
            elif k not in out: out[k]=v
        else:
            out[k] = min(out[k],v) if k in out else v
    return out

def fix_hazards(ins):
    labels = {I.label:i for i,I in enumerate(ins) if I.label}
    n=len(ins)
    changed=True; it=0
    while changed:
        changed=False; it+=1
        instate=[None]*(n+1); instate[0]={}
        work=[0]
        while work:
            i=work.pop()
            st=instate[i]
            while i<n:
                I=ins[i]
                nd = need_states(I, {k:(v if k[0] in ("id","dlop") else v+I.nops) for k,v in st.items()}) if I.cls not in ("label","dir") else 0
                if nd>0:
                    I.nops+=nd; changed=True
                st=apply(I,st,I.nops)
                succ=[]
                if I.op=="s_endpgm": break
                if I.cls=="branch":
                    succ.append(labels[I.ops[0]])
                    if I.op!="s_branch": succ.append(i+1)
                    for s in succ:
                        new = st if instate[s] is None else join(instate[s],st)
                        if new!=instate[s]: instate[s]=new; work.append(s)
                    break
                nx=i+1
                if nx<n and ins[nx].label:
                    new = st if instate[nx] is None else join(instate[nx],st)
                    if new!=instate[nx]: instate[nx]=new; work.append(nx)
                    break
                i=nx
        assert it<50
    return ins

def check_waits(ins, taken=()):
    labels = {I.label:i for i,I in enumerate(ins) if I.label}
    vm=[]; lg=[]; errs=[]
    i=0; seen=set(); n=len(ins)
    while i<n:
        I=ins[i]
        if I.op=="s_endpgm": break
        if I.op=="s_waitcnt":
            t=I.code
            m=re.search(r"vmcnt\((\d+)\)",t)
            if m:
                k=int(m.group(1));
                assert k<=63
                vm=vm[len(vm)-k:] if k<len(vm) and k>0 else ([] if k==0 else vm)
            m=re.search(r"lgkmcnt\((\d+)\)",t)
            if m:
                k=int(m.group(1)); assert k<=15
                if k==0: lg=[]
                else:
                    if any(x[1]=="smem" for x in lg): pass
                    elif k<len(lg): lg=lg[len(lg)-k:]
        elif I.cls not in ("label","dir"):
            pend=set()
            for x in vm+lg: pend.update(x[0])
            bad=[r for r in I.rd+I.wr if r in pend]
            if bad: errs.append(f"line {i}: '{I.code}' touches pending load regs {sorted(set(bad))[:4]}")
            if I.vm:
                vm.append((list(I.wr),"vm"))
                if len(vm)>63: errs.append(f"line {i}: vmcnt overflow ({len(vm)})")
            if I.lg: lg.append((list(I.wr),I.cls))
        if I.cls=="branch":
            t=labels[I.ops[0]]
            if I.op=="s_branch":
                if t<=i:
                    if i in seen: break
                    seen.add(i)
                i=t; continue
            if t<=i:
                if i not in seen: seen.add(i); i=t; continue
            elif I.ops[0] in taken: i=t; continue
        i+=1
    return errs

class Asm:
    def __init__(self, name):
        self.name=name; self.lines=[]; self.uid=0
    def __call__(self, s):
        for l in s.split("\n"):
            if l.strip(): self.lines.append(l.strip())
    def label(self, base):
        self.uid+=1; return f"L_{self.name}_{base}_{self.uid}"
    def finish(self, vgpr, sgpr=100, accum=None, taken_sets=((),), verbose=False):
        ins=[Ins(l) for l in self.lines]
        fix_hazards(ins)
        errs=[]
        for t in taken_sets: errs+=check_waits(ins,t)
        if errs:
            for e in errs[:20]: print("WAITERR", self.name, e)
            raise Exception("waitcnt errors")
        mv=max([r[1] for I in ins for r in I.rd+I.wr if r[0]=="v"]+[0]); ma=max([r[1] for I in ins for r in I.rd+I.wr if r[0]=="a"]+[-1])
        ms=max([r[1] for I in ins for r in I.rd+I.wr if r[0]=="s" and r[1]<102]+[0])
        if accum is None: accum=(mv+1+3)//4*4
        assert mv<accum, (mv,accum)
        tot = accum+ma+1 if ma>=0 else mv+1
        assert tot<=vgpr, (tot,vgpr)
        assert ms<sgpr
        out=[f".globl {self.name}_kernel", ".p2align 8", f".type {self.name}_kernel,@function", f"{self.name}_kernel:"]
        nn=0
        for I in ins:
            k=I.nops
            while k>0:
                c=min(k,16); out.append(f"    s_nop {c-1}"); k-=c; nn+=1
            out.append(I.text if I.label else "    "+I.text)
        desc=f""".amdhsa_kernel {self.name}_kernel
  .amdhsa_next_free_vgpr {vgpr}
  .amdhsa_next_free_sgpr {sgpr}
  .amdhsa_accum_offset {min(256,(accum if ma>=0 else (vgpr+3)//4*4))}
  .amdhsa_group_segment_fixed_size 0
  .amdhsa_kernarg_size 88
  .amdhsa_user_sgpr_count 2
  .amdhsa_user_sgpr_kernarg_segment_ptr 1
  .amdhsa_system_sgpr_workgroup_id_x 1
.end_amdhsa_kernel"""
        if verbose: print(f"{self.name}: {len(ins)} lines, maxv={mv} maxa={ma} maxs={ms} nops={nn}")
        return "\n".join(out), desc

def build_file(header, launches, kernels):
    s = header
    for (nm,g,b,l) in launches:
        s += f"; @launch kernel={nm}_kernel grid=({g},1,1) block=({b},1,1) lds={l}\n"
    s += '.amdgcn_target "amdgcn-amd-amdhsa--gfx950"\n.text\n'
    for c,_ in kernels: s += c + "\n"
    s += '.section .rodata,"a"\n'
    for _,d in kernels: s += ".p2align 6\n" + d + "\n"
    return s
```

```python
import sys, math
from asmlib import *

S=2048; D=448; F=1792; H=16; DH=28
WS0=65536
WS_Q=WS0; WS_KV=WS0+(2<<20); WS_O=WS0+(6<<20); WS_H=WS0+(8<<20); WS_R=WS0+(10<<20); WS_CS=WS0+(18<<20)
WS_BYTES=268435456
ARG=dict(x=0,wqkv=8,wo=16,bx=24,w1=32,b1=40,w2=48,b2=56,out=64,dbg=72,ws=80)
SZ=dict(x=S*D*2,wqkv=D*3*D*2,wo=D*D*2,w1=D*F*2,b1=F*2,w2=F*D*2,b2=D*2,out=S*D*2,dbg=256,ws=WS_BYTES)
ONES=0x3f803f80
def f2u(f):
    import struct; return struct.unpack("<I",struct.pack("<f",f))[0]
QSCALE=f2u(28**-0.5*math.log2(math.e))

def load_srds(a, lst):
    for nm,sb in lst:
        a(f"s_load_dwordx2 s[{sb}:{sb+1}], s[0:1], {ARG[nm]}")
    for nm,sb in lst:
        a(f"s_mov_b32 s{sb+2}, {SZ[nm]}")
        a(f"s_mov_b32 s{sb+3}, 0x20000")

def vr(b,n): return f"v[{b}:{b+n-1}]" if n>1 else f"v{b}"

def ln_stats(a, vsum, vssq, va, vb, t0, t1, qs=None):
    a(f"v_mul_f32 v{t0}, {hex(f2u(1.0/D))}, v{vsum}")
    a(f"v_mul_f32 v{t1}, {hex(f2u(1.0/D))}, v{vssq}")
    a(f"v_fma_f32 v{t1}, -v{t0}, v{t0}, v{t1}")
    a(f"v_max_f32 v{t1}, 0, v{t1}")
    a(f"v_cvt_pk_bf16_f32 v{t1}, v{t1}, v{t0}")
    a(f"v_and_b32 v{t0}, 0xffff0000, v{t1}")
    a(f"v_lshlrev_b32 v{t1}, 16, v{t1}")
    a(f"v_add_f32 v{t1}, {hex(f2u(1e-5))}, v{t1}")
    a(f"v_cvt_pk_bf16_f32 v{t1}, v{t1}, v{t1}")
    a(f"v_lshlrev_b32 v{t1}, 16, v{t1}")
    a(f"v_sqrt_f32 v{t1}, v{t1}")
    a(f"v_cvt_pk_bf16_f32 v{t1}, v{t1}, v{t1}")
    a(f"v_lshlrev_b32 v{t1}, 16, v{t1}")
    a(f"v_rcp_f32 v{va}, v{t1}")
    a(f"v_mul_f32 v{vb}, v{t0}, v{va}")

def k1():
    a=Asm("qkv")
    SX,SW,SWS=8,12,16
    SLOT=28672; NSLOT=5; ST=SLOT*NSLOT
    CS=ST; STAT=ST+384; AB=STAT+1024; LDS=AB+1024
    a("s_cmp_ge_u32 s2, 224\ns_cbranch_scc1 L_qkv_end")
    load_srds(a,[("x",SX),("wqkv",SW),("ws",SWS)])
    a("""s_and_b32 s3, s2, 7
s_lshr_b32 s4, s2, 3
s_mul_i32 s5, s4, 37
s_lshr_b32 s5, s5, 8            ; i/7
s_mul_i32 s6, s5, 7
s_sub_u32 s6, s4, s6            ; i%7
s_lshr_b32 s7, s3, 1
s_lshl_b32 s7, s7, 2
s_add_u32 s20, s7, s5           ; rb
s_and_b32 s3, s3, 1
s_mul_i32 s3, s3, 7
s_add_u32 s21, s3, s6           ; cb
v_lshrrev_b32 v1, 6, v0
v_and_b32 v2, 63, v0            ; lane
v_readfirstlane_b32 s22, v1     ; wave""")
    a(f"""v_lshlrev_b32 v3, 3, v0
v_add_u32 v3, {ST}, v3
v_mov_b32 v4, 0
v_mov_b32 v5, 0
ds_write_b64 v3, v[4:5]""")
    a(f"""s_lshl_b32 s23, s20, 7
s_lshl_b32 s24, s22, 5
s_add_u32 s23, s23, s24
v_lshrrev_b32 v3, 3, v2
v_add_u32 v3, s23, v3
v_mul_u32_u24 v3, 896, v3
v_and_b32 v4, 7, v2
v_lshrrev_b32 v5, 4, v2
v_xor_b32 v4, v4, v5
v_lshl_add_u32 v6, v4, 4, v3
v_xor_b32 v4, 4, v4
v_lshl_add_u32 v7, v4, 4, v3""")
    a(f"""s_lshl_b32 s24, s22, 4
v_lshrrev_b32 v3, 2, v2
v_add_u32 v3, s24, v3
v_mul_u32_u24 v3, 2688, v3
v_and_b32 v4, 3, v2
v_lshl_add_u32 v8, v4, 4, v3
s_lshl_b32 s25, s21, 7
s_lshl_b32 s26, s21, 6
s_add_u32 s26, s26, 1792
s_lshl_b32 s27, s22, 12          ; w*4096
s_lshl_b32 s28, s22, 10          ; w*1024
s_waitcnt lgkmcnt(0)""")
    def dma(j):
        sl=(j%NSLOT)*SLOT
        for i in range(4):
            a(f"s_add_u32 m0, s27, {sl+i*1024}")
            a(f"s_movk_i32 s29, {8*i*896+128*j}")
            a(f"buffer_load_dwordx4 v{6+(i&1)}, s[{SX}:{SX+3}], s29 offen lds")
        for u in range(3):
            a(f"s_add_u32 m0, s28, {sl+16384+u*4096}")
            a(f"s_add_u32 s29, s{25 if u<2 else 26}, {64*j*2688+(64 if u==1 else 0)}")
            a(f"buffer_load_dwordx4 v8, s[{SW}:{SW+3}], s29 offen lds")
    for j in range(5): dma(j)
    a(f"""v_and_b32 v3, 31, v2            ; t
v_lshrrev_b32 v11, 5, v2         ; hh
v_bfe_u32 v4, v3, 1, 3
v_xor_b32 v4, v4, v11
v_lshlrev_b32 v4, 4, v4
v_lshl_add_u32 v9, v3, 7, v4
v_add_u32 v9, s27, v9
v_bfe_u32 v4, v2, 2, 2           ; r
v_lshl_add_u32 v4, v11, 3, v4    ; 8hh+r
v_lshlrev_b32 v4, 6, v4
v_bfe_u32 v5, v2, 4, 1
v_lshl_add_u32 v4, v5, 5, v4
v_and_b32 v5, 3, v2
v_lshl_add_u32 v10, v5, 3, v4
v_add_u32 v10, 16384, v10
v_mov_b32 v12, {hex(ONES)}""")
    ACC=[16,32,48]; SUM=[64,65]; SSQ=[66,67]; CSV=[68,69,70]
    FR=[72,88]
    XA,WA=13,14
    for r in list(range(16,71)): a(f"v_mov_b32 v{r}, 0")
    waits={0:28,1:21,2:14,3:14,4:14,5:7,6:0}
    def reads(s):
        j,ks=divmod(s,4); fb=FR[s&1]
        if ks==0:
            a(f"s_waitcnt vmcnt({waits[j]})")
            a("s_barrier")
            if j==2: dma(5)
            if j==3: dma(6)
            sl=(j%NSLOT)*SLOT
            a(f"v_add_u32 v{XA}, {sl}, v9")
            a(f"v_add_u32 v{WA}, {sl}, v10")
            a(f"ds_read_b128 {vr(fb,4)}, v{XA}")
        else:
            a(f"v_xor_b32 v15, {32*ks}, v{XA}")
            a(f"ds_read_b128 {vr(fb,4)}, v15")
        for u in range(3):
            for i in range(2):
                a(f"ds_read_b64_tr_b16 {vr(fb+4+4*u+2*i,2)}, v{WA} offset:{u*4096+ks*1024+i*256}")
    a("s_waitcnt lgkmcnt(0)")
    reads(0)
    for s in range(28):
        fb=FR[s&1]
        if s+1<28:
            reads(s+1); a("s_waitcnt lgkmcnt(7)")
        else: a("s_waitcnt lgkmcnt(0)")
        a(f"v_mfma_f32_32x32x16_bf16 {vr(ACC[0],16)}, {vr(fb+4,4)}, {vr(fb,4)}, {vr(ACC[0],16)}")
        for i in range(4):
            a(f"v_dot2_f32_bf16 v{SUM[i&1]}, v{fb+i}, v12, v{SUM[i&1]}")
        a(f"v_mfma_f32_32x32x16_bf16 {vr(ACC[1],16)}, {vr(fb+8,4)}, {vr(fb,4)}, {vr(ACC[1],16)}")
        for i in range(4):
            a(f"v_dot2_f32_bf16 v{SSQ[i&1]}, v{fb+i}, v{fb+i}, v{SSQ[i&1]}")
        a(f"v_mfma_f32_32x32x16_bf16 {vr(ACC[2],16)}, {vr(fb,4)}, {vr(fb+12,4)}, {vr(ACC[2],16)}")
        L=a.label("cs")
        a(f"s_cmp_lg_u32 s22, {s&3}\ns_cbranch_scc1 {L}")
        for i in range(4):
            for u in range(3):
                a(f"v_dot2_f32_bf16 v{CSV[u]}, v{fb+4+4*u+i}, v12, v{CSV[u]}")
        a(f"{L}:")
    a(f"""v_add_f32 v{SUM[0]}, v{SUM[0]}, v{SUM[1]}
v_add_f32 v{SSQ[0]}, v{SSQ[0]}, v{SSQ[1]}
v_and_b32 v3, 31, v2
s_lshl_b32 s29, s22, 8
v_lshl_add_u32 v4, v3, 3, s29
v_add_u32 v4, {STAT}, v4
ds_add_f32 v4, v{SUM[0]}
ds_add_f32 v4, v{SSQ[0]} offset:4
v_lshlrev_b32 v5, 2, v3
v_add_u32 v5, {CS}, v5""")
    for u in range(3): a(f"ds_add_f32 v5, v{CSV[u]} offset:{u*128}")
    a("s_waitcnt lgkmcnt(0)\ns_barrier")
    a(f"ds_read_b64 v[72:73], v4")
    a(f"ds_read_b32 v74, v5 offset:256")
    a(f"v_lshlrev_b32 v13, 4, v11\nv_add_u32 v13, {CS}, v13")
    for u in range(2):
        for g in range(4):
            a(f"ds_read_b128 {vr(80+16*u+4*g,4)}, v13 offset:{u*128+g*32}")
    a("s_waitcnt lgkmcnt(0)")
    ln_stats(a,72,73,76,77,78,79)
    a(f"""s_lshl_b32 s29, s22, 8
v_lshl_add_u32 v4, v3, 2, s29
v_add_u32 v4, {AB}, v4
ds_write_b32 v4, v76
ds_write_b32 v4, v77 offset:128
v_lshlrev_b32 v13, 4, v11
v_add_u32 v13, s29, v13
v_add_u32 v13, {AB}, v13
s_waitcnt lgkmcnt(0)""")
    for g in range(4):
        a(f"ds_read_b128 {vr(112+4*g,4)}, v13 offset:{g*32}")
        a(f"ds_read_b128 {vr(128+4*g,4)}, v13 offset:{128+g*32}")
    a(f"""s_cmp_lt_u32 s21, 7
s_cselect_b32 s30, {hex(QSCALE)}, 1.0
v_mul_f32 v78, s30, v76
v_mul_f32 v79, s30, v77""")
    for u in range(2):
        for r in range(16):
            a(f"v_mul_f32 v{ACC[u]+r}, v{ACC[u]+r}, v78")
            a(f"v_fma_f32 v{ACC[u]+r}, -v{80+16*u+r}, v79, v{ACC[u]+r}")
        for p in range(8):
            a(f"v_cvt_pk_bf16_f32 v{ACC[u]+p}, v{ACC[u]+2*p}, v{ACC[u]+2*p+1}")
    a(f"""s_lshl_b32 s31, s20, 2
s_add_u32 s31, s31, s22          ; t
s_cmp_lt_u32 s21, 7
s_cselect_b32 s32, 11, 12
s_mov_b32 s33, {WS_KV-512}
s_cselect_b32 s33, {WS_Q-512}, s33
s_cselect_b32 s34, 0, 7
s_sub_u32 s34, s21, s34          ; cb' (0..6)
s_lshl_b32 s35, s31, s32
s_add_u32 s33, s33, s35
s_add_u32 s32, s32, 6
v_lshlrev_b32 v14, 4, v3         ; token*16
v_add_u32 v14, 512, v14
v_mov_b32 v144, 0x3f803f80
v_mov_b32 v145, 0x00003f80""")
    def q4off(dst, q4, e):
        a(f"""s_mul_i32 s40, s{q4}, 147
s_lshr_b32 s40, s40, 10          ; head
s_mul_i32 s41, s40, 7
s_sub_u32 s{e}, s{q4}, s41       ; e
s_lshl_b32 s40, s40, s32
s_lshr_b32 s41, s{e}, 2
s_lshl_b32 s41, s41, 10
s_add_u32 s40, s40, s41
s_and_b32 s41, s{e}, 1
s_lshl_b32 s41, s41, 9
s_add_u32 s40, s40, s41
s_and_b32 s41, s{e}, 2
s_lshl_b32 s41, s41, 2
s_add_u32 s40, s40, s41
s_add_u32 s{dst}, s40, s33""")
    for u in range(2):
        for g in range(4):
            a(f"s_lshl_b32 s36, s34, 4\ns_add_u32 s36, s36, {8*u+2*g}")
            q4off(37,36,38)
            a("s_add_u32 s36, s36, 1")
            q4off(42,36,39)
            a("s_sub_u32 s43, s42, s37")
            a(f"v_mad_i32_i24 v15, v11, s43, v14")
            a(f"buffer_store_dwordx2 {vr(ACC[u]+2*g,2)}, v15, s[{SWS}:{SWS+3}], s37 offen")
            L0=a.label("p0"); L1=a.label("p1")
            a(f"s_cmp_lg_u32 s38, 5\ns_cbranch_scc1 {L0}")
            a(f"s_mov_b64 exec, 0xffffffff" if False else "s_mov_b32 exec_hi, 0")
            a(f"buffer_store_dwordx2 v[144:145], v15, s[{SWS}:{SWS+3}], s37 offen offset:8")
            a("s_mov_b32 exec_hi, -1")
            a(f"{L0}:")
            a(f"s_cmp_lg_u32 s39, 5\ns_cbranch_scc1 {L1}")
            a("s_mov_b32 exec_lo, 0")
            a(f"buffer_store_dwordx2 v[144:145], v15, s[{SWS}:{SWS+3}], s37 offen offset:8")
            a("s_mov_b32 exec_lo, -1")
            a(f"{L1}:")
    a("s_waitcnt lgkmcnt(0)")
    for r in range(16):
        a(f"v_mul_f32 v{ACC[2]+r}, v{ACC[2]+r}, v{112+r}")
        a(f"v_fma_f32 v{ACC[2]+r}, -v74, v{128+r}, v{ACC[2]+r}")
    for p in range(8):
        a(f"v_cvt_pk_bf16_f32 v{ACC[2]+p}, v{ACC[2]+2*p}, v{ACC[2]+2*p+1}")
    a(f"""s_lshl_b32 s36, s21, 5
v_add_u32 v4, s36, v3            ; n
v_mul_u32_u24 v5, 2341, v4
v_lshrrev_b32 v5, 16, v5         ; head = n/28
v_mul_u32_u24 v13, 28, v5
v_sub_u32 v13, v4, v13           ; d
v_lshlrev_b32 v5, 18, v5         ; head*64*4096
v_lshl_add_u32 v4, v11, 5, v13   ; d+32hh
v_lshl_add_u32 v5, v4, 4, v5
s_lshl_b32 s35, s31, 12
s_add_u32 s35, s35, {WS_KV+2048}
buffer_store_dwordx4 {vr(ACC[2],4)}, v5, s[{SWS}:{SWS+3}], s35 offen
buffer_store_dwordx4 {vr(ACC[2]+4,4)}, v5, s[{SWS}:{SWS+3}], s35 offen offset:1024
v_cmp_eq_u32 vcc, 24, v13
v_mov_b32 v4, 0
v_cndmask_b32 v148, v4, v144, vcc
v_mov_b32 v149, v148
v_mov_b32 v150, v148
v_mov_b32 v151, v148
v_cmp_le_u32 vcc, 24, v13
s_and_saveexec_b64 s[44:45], vcc
s_cbranch_execz L_qkv_end
buffer_store_dwordx4 v[148:151], v5, s[{SWS}:{SWS+3}], s35 offen offset:64
buffer_store_dwordx4 v[148:151], v5, s[{SWS}:{SWS+3}], s35 offen offset:1088
L_qkv_end:
s_endpgm""")
    for n in range(448): assert (n*2341)>>16 == n//28
    for q in range(112): assert (q*147)>>10 == q//7
    return a.finish(152,64,verbose=True), ("qkv",224,256,LDS)


def k2():
    a=Asm("attn")
    SWS=8
    RED=0; FLAG=131072; MX=FLAG+64; LDS=MX+8*4*64*4
    Q=16; O=48; SS=[112,128]; P=[144,152]; KV=[160,176,192]
    a("s_cmp_ge_u32 s2, 256\ns_cbranch_scc1 L_attn_end")
    load_srds(a,[("ws",SWS)])
    a(f"""s_and_b32 s3, s2, 7
s_lshl_b32 s3, s3, 1
s_bfe_u32 s4, s2, 0x10003
s_add_u32 s20, s3, s4            ; h
s_lshr_b32 s21, s2, 4            ; qb
v_lshrrev_b32 v1, 6, v0
v_and_b32 v2, 63, v0
v_readfirstlane_b32 s22, v1      ; wave
v_lshlrev_b32 v3, 4, v2          ; lane*16
v_lshrrev_b32 v11, 5, v2         ; hh
s_lshl_b32 s23, s20, 6
s_lshl_b32 s24, s21, 2
s_add_u32 s24, s24, s23          ; h*64+qb*4
s_lshl_b32 s24, s24, 11
s_add_u32 s24, s24, {WS_Q}       ; Q base
s_lshl_b32 s25, s22, 3
s_add_u32 s25, s25, s23          ; h*64 + 8w
s_lshl_b32 s25, s25, 12
s_add_u32 s25, s25, {WS_KV}
s_mov_b32 s26, 0
v_mov_b32 v4, 0
v_mov_b32 v5, {FLAG}
ds_write_b32 v5, v4
s_waitcnt lgkmcnt(0)""")
    def ldkv(kt):
        b=KV[kt%3]
        a(f"s_add_u32 s27, s25, {kt*4096}")
        for i in range(4):
            a(f"buffer_load_dwordx4 {vr(b+4*i,4)}, v3, s[{SWS}:{SWS+3}], s27 offen offset:{i*1024}")
    for qt in range(4):
        a(f"s_add_u32 s27, s24, {qt*2048}")
        for i in range(2):
            a(f"buffer_load_dwordx4 {vr(Q+8*qt+4*i,4)}, v3, s[{SWS}:{SWS+3}], s27 offen offset:{i*1024}")
    ldkv(0); ldkv(1)
    a("v_cmp_eq_u32 vcc, 1, v11")
    a("s_waitcnt vmcnt(8)")
    for qt in range(4):
        for i in (6,7):
            a(f"v_cndmask_b32 v{Q+8*qt+i}, v{Q+8*qt+i}, v4, vcc")
    a("L_attn_main:")
    for r in range(64): a(f"v_mov_b32 v{O+r}, 0")
    def smf(n,i):
        kt,qt=divmod(n,4); b=KV[kt%3]; s=SS[n&1]
        c = "0" if i==0 else vr(s,16)
        return f"v_mfma_f32_32x32x16_bf16 {vr(s,16)}, {vr(b+4*i,4)}, {vr(Q+8*qt+4*i,4)}, {c}"
    def pmf(n,i):
        kt,qt=divmod(n,4); b=KV[kt%3]
        return f"v_mfma_f32_32x32x16_bf16 {vr(O+16*qt,16)}, {vr(b+8+4*i,4)}, {vr(P[n&1]+4*i,4)}, {vr(O+16*qt,16)}"
    a("s_waitcnt vmcnt(6)")
    a(smf(0,0)); a(smf(0,1))
    N=32
    for n in range(N):
        kt,qt=divmod(n,4)
        s=SS[n&1]; p=P[n&1]
        ex=[f"v_exp_f32 v{s+i}, v{s+i}" for i in range(16)]
        cv=[f"v_cvt_pk_bf16_f32 v{p+i}, v{s+2*i}, v{s+2*i+1}" for i in range(8)]
        if qt==1 and kt+2<8: ldkv(kt+2)
        if n+1<N and (n+1)%4==0:
            a(f"s_waitcnt vmcnt({2+(4 if kt+2<8 else 0)})")
        if n>=1 and (n-1)%4==0:
            a(f"s_waitcnt vmcnt({(4 if kt+1<8 else 0)+(4 if kt+2<8 else 0)})")
        m=[]
        if n+1<N: m.append(smf(n+1,0))
        if n>=1: m.append(pmf(n-1,0))
        if n+1<N: m.append(smf(n+1,1))
        if n>=1: m.append(pmf(n-1,1))
        groups=[ex[0:4]+cv[0:1], ex[4:8]+cv[1:3], ex[8:12]+cv[3:5], ex[12:16]+cv[5:8]]
        for gi in range(4):
            if gi<len(m): a(m[gi])
            for l in groups[gi]: a(l)
    a(pmf(N-1,0)); a(pmf(N-1,1))
    a(f"s_lshl_b32 s27, s22, 14\nv_add_u32 v5, s27, v3")
    for qt in range(4):
        for g in range(4):
            a(f"ds_write_b128 v5, {vr(O+16*qt+4*g,4)} offset:{(qt*4+g)*1024}")
    a(f"""s_waitcnt lgkmcnt(0)
s_barrier
s_lshr_b32 s28, s22, 1           ; qt
s_and_b32 s29, s22, 1            ; s
s_lshl_b32 s27, s28, 12
s_lshl_b32 s30, s29, 11
s_add_u32 s30, s30, s27
v_add_u32 v5, s30, v3
v_add_u32 v6, 0x10000, v5
v_or_b32 v7, 512, v3
s_add_u32 s27, s27, 3072
v_add_u32 v7, s27, v7            ; l address
v_add_u32 v8, 0x10000, v7""")
    T=112
    for p in range(8):
        av,lv=(5,7) if p<4 else (6,8)
        off=(p&3)*16384
        a(f"ds_read_b128 {vr(T+8*p,4)}, v{av} offset:{off}")
        a(f"ds_read_b128 {vr(T+8*p+4,4)}, v{av} offset:{off+1024}")
        a(f"ds_read_b32 v{T+64+p}, v{lv} offset:{off}")
        if p==3: a("s_waitcnt lgkmcnt(0)")
    a("s_waitcnt lgkmcnt(0)")
    for p in range(1,8):
        for r in range(8): a(f"v_add_f32 v{T+r}, v{T+r}, v{T+8*p+r}")
        a(f"v_add_f32 v{T+64}, v{T+64}, v{T+64+p}")
    a(f"""v_rcp_f32 v9, v{T+64}
v_cmp_eq_u32 vcc, 1, v11
s_cmp_eq_u32 s29, 1
s_cselect_b64 s[32:33], vcc, 0""")
    for r in range(8): a(f"v_mul_f32 v{T+r}, v{T+r}, v9")
    for r in range(4): a(f"v_cvt_pk_bf16_f32 v{T+r}, v{T+2*r}, v{T+2*r+1}")
    a(f"""v_cndmask_b32 v{T+2}, v{T+2}, v4, s[32:33]
v_cndmask_b32 v{T+3}, v{T+3}, v4, s[32:33]
s_lshl_b32 s27, s21, 2
s_add_u32 s27, s27, s28          ; t
s_lshl_b32 s27, s27, 4
s_add_u32 s27, s27, s20
s_lshl_b32 s27, s27, 1
s_add_u32 s27, s27, s29
s_lshl_b32 s27, s27, 10
s_add_u32 s27, s27, {WS_O}
buffer_store_dwordx4 {vr(T,4)}, v3, s[{SWS}:{SWS+3}], s27 offen
s_cmp_lg_u32 s26, 0
s_cbranch_scc1 L_attn_end
v_cmp_nle_f32 vcc, {hex(f2u(2.0**-60))}, v{T+64}
v_mov_b32 v10, {hex(f2u(2.0**60))}
v_cmp_nle_f32 s[34:35], v{T+64}, v10
s_or_b64 vcc, vcc, s[34:35]
s_cbranch_vccz L_attn_ok
v_mov_b32 v5, {FLAG}
v_mov_b32 v6, 1
ds_write_b32 v5, v6
L_attn_ok:
s_waitcnt lgkmcnt(0)
s_barrier
v_mov_b32 v5, {FLAG}
ds_read_b32 v6, v5
s_waitcnt lgkmcnt(0)
v_readfirstlane_b32 s27, v6
s_cmp_eq_u32 s27, 0
s_cbranch_scc1 L_attn_end
s_mov_b32 s26, 1""")
    M=144
    for qt in range(4): a(f"v_mov_b32 v{M+qt}, 0xff800000")
    a("s_mov_b32 s28, 0\nL_attn_mx:\ns_add_u32 s27, s25, s28")
    for i in range(2): a(f"buffer_load_dwordx4 {vr(KV[0]+4*i,4)}, v3, s[{SWS}:{SWS+3}], s27 offen offset:{i*1024}")
    a("s_waitcnt vmcnt(0)")
    for qt in range(4):
        s=SS[0]
        a(f"v_mfma_f32_32x32x16_bf16 {vr(s,16)}, {vr(KV[0],4)}, {vr(Q+8*qt,4)}, 0")
        a(f"v_mfma_f32_32x32x16_bf16 {vr(s,16)}, {vr(KV[0]+4,4)}, {vr(Q+8*qt+4,4)}, {vr(s,16)}")
        for i in range(8): a(f"v_max3_f32 v{M+qt}, v{s+2*i}, v{s+2*i+1}, v{M+qt}")
    a(f"""s_add_u32 s28, s28, 4096
s_cmp_lt_u32 s28, 32768
s_cbranch_scc1 L_attn_mx
s_lshl_b32 s27, s22, 10
v_lshl_add_u32 v5, v2, 2, s27
v_add_u32 v5, {MX}, v5""")
    for qt in range(4): a(f"ds_write_b32 v5, v{M+qt} offset:{qt*256}")
    a(f"""s_waitcnt lgkmcnt(0)
s_barrier
v_and_b32 v5, 31, v2
v_lshlrev_b32 v5, 2, v5
v_add_u32 v5, {MX}, v5""")
    for qt in range(4):
        for p in range(8):
            a(f"ds_read2_b32 {vr(112+2*p,2)}, v5 offset0:{(p*1024+qt*256)//4 if False else 0} offset1:32" if False else f"ds_read_b32 v{112+2*p}, v5 offset:{p*1024+qt*256}")
            a(f"ds_read_b32 v{113+2*p}, v5 offset:{p*1024+qt*256+128}")
            if p==3: a("s_waitcnt lgkmcnt(0)")
        a("s_waitcnt lgkmcnt(0)")
        for p in range(8): a(f"v_max3_f32 v{M+qt}, v{112+2*p}, v{113+2*p}, v{M+qt}")
        a(f"""v_sub_f32 v6, 0, v{M+qt}
v_and_b32 v7, 0xffff0000, v6
v_sub_f32 v6, v6, v7
v_and_b32 v8, 0xffff0000, v6
v_sub_f32 v6, v6, v8
v_lshrrev_b32 v7, 16, v7
v_or_b32 v7, v7, v8
v_lshrrev_b32 v6, 16, v6
v_cmp_eq_u32 vcc, 1, v11
v_cndmask_b32 v{Q+8*qt+6}, v{Q+8*qt+6}, v7, vcc
v_cndmask_b32 v{Q+8*qt+7}, v{Q+8*qt+7}, v6, vcc""")
    a("s_barrier")
    ldkv(0); ldkv(1)
    a("s_branch L_attn_main\nL_attn_end:\ns_endpgm")
    return a.finish(208,64,verbose=True), ("attn",256,512,LDS)


def decode_4x7(a, mode):
    a("""s_and_b32 s3, s2, 7
s_lshr_b32 s4, s2, 3
s_mul_i32 s5, s4, 37
s_lshr_b32 s5, s5, 8
s_mul_i32 s6, s5, 7
s_sub_u32 s6, s4, s6""")
    if mode=="A":
        a("""s_lshr_b32 s7, s3, 1
s_lshl_b32 s7, s7, 2
s_add_u32 s20, s7, s5
s_and_b32 s3, s3, 1
s_mul_i32 s3, s3, 7
s_add_u32 s21, s3, s6""")
    else:
        a("""s_lshl_b32 s7, s3, 2
s_add_u32 s20, s7, s5
s_mov_b32 s21, s6""")
    a("""v_lshrrev_b32 v1, 6, v0
v_and_b32 v2, 63, v0
v_readfirstlane_b32 s22, v1
v_lshrrev_b32 v11, 5, v2
v_lshlrev_b32 v12, 4, v2""")

def tr_base(a, dst, t0, t1):
    a(f"""v_bfe_u32 v{t0}, v2, 2, 2
v_lshl_add_u32 v{t0}, v11, 2, v{t0}
v_lshlrev_b32 v{t0}, 6, v{t0}
v_bfe_u32 v{t1}, v2, 4, 1
v_lshl_add_u32 v{t0}, v{t1}, 5, v{t0}
v_and_b32 v{t1}, 3, v2
v_lshl_add_u32 v{dst}, v{t1}, 3, v{t0}""")

def reduce4(a, ACC, T, wstride):
    a(f"s_mul_i32 s27, s22, {wstride}\nv_add_u32 v5, s27, v12")
    for q in range(16):
        a(f"ds_write_b128 v5, {vr(ACC+4*q,4)} offset:{q*1024}")
    a(f"s_waitcnt lgkmcnt(0)\ns_barrier\ns_lshl_b32 s27, s22, 12\nv_add_u32 v5, s27, v12")
    for p in range(4):
        if p: a(f"v_add_u32 v5, {wstride}, v5")
        for g in range(4):
            a(f"ds_read_b128 {vr(T+16*p+4*g,4)}, v5 offset:{g*1024}")
        if p==1: a("s_waitcnt lgkmcnt(0)")
    a("s_waitcnt lgkmcnt(0)")
    for r in range(16):
        a(f"v_add_f32 v{T+r}, v{T+r}, v{T+16+r}")
        a(f"v_add_f32 v{T+32+r}, v{T+32+r}, v{T+48+r}")
    for r in range(16):
        a(f"v_add_f32 v{T+r}, v{T+r}, v{T+32+r}")

def k3():
    a=Asm("wo")
    SX,SW,SWS=8,12,16
    a("s_cmp_ge_u32 s2, 224\ns_cbranch_scc1 L_wo_end")
    load_srds(a,[("x",SX),("wo",SW),("ws",SWS)])
    decode_4x7(a,"B")
    OB=16; ACC=80; FR=[144,152]; XR=160; T=16
    a(f"""s_mul_i32 s24, s22, 112
v_lshrrev_b32 v3, 2, v2
v_add_u32 v3, s24, v3
v_mul_u32_u24 v3, 896, v3
v_and_b32 v4, 3, v2
v_lshl_add_u32 v8, v4, 4, v3
s_lshl_b32 s25, s21, 7
s_lshl_b32 s26, s22, 14          ; w*16384
s_lshl_b32 s28, s20, 16
s_lshl_b32 s29, s22, 13
s_add_u32 s28, s28, s29
s_add_u32 s28, s28, {WS_O}
s_waitcnt lgkmcnt(0)""")
    for half in range(2):
        for i in range(4*half,4*half+4):
            for u in range(2):
                a(f"s_add_u32 m0, s26, {u*8192+i*1024}")
                a(f"s_add_u32 s29, s25, {16*i*896+64*u}")
                a(f"buffer_load_dwordx4 v8, s[{SW}:{SW+3}], s29 offen lds")
        for mt in range(2):
            a(f"s_add_u32 s29, s28, {mt*32768+half*4096}")
            for ks in range(4):
                a(f"buffer_load_dwordx4 {vr(OB+32*mt+16*half+4*ks,4)}, v12, s[{SWS}:{SWS+3}], s29 offen offset:{ks*1024}")
    a(f"""s_lshr_b32 s30, s22, 1
s_and_b32 s31, s22, 1
s_lshl_b32 s32, s20, 1
s_add_u32 s32, s32, s30          ; t
v_and_b32 v3, 31, v2
s_lshl_b32 s33, s32, 5
v_add_u32 v3, s33, v3
v_mul_u32_u24 v3, 896, v3
v_lshl_add_u32 v3, v11, 3, v3
s_lshl_b32 s33, s31, 6
s_add_u32 s33, s33, s25""")
    for g in range(4):
        a(f"buffer_load_dwordx2 {vr(XR+2*g,2)}, v3, s[{SX}:{SX+3}], s33 offen offset:{16*g}")
    tr_base(a,10,4,5)
    a("v_add_u32 v10, s26, v10")
    for r in range(64): a(f"v_mov_b32 v{ACC+r}, 0")
    def reads(k):
        hl,s=divmod(k,2); fb=FR[k&1]
        for u in range(2):
            for i in range(2):
                a(f"ds_read_b64_tr_b16 {vr(fb+4*u+2*i,2)}, v10 offset:{u*8192+(28*hl+16*s+8*i)*64}")
    a("s_waitcnt vmcnt(20)")
    reads(0)
    for k in range(8):
        fb=FR[k&1]
        if k==3: a("s_waitcnt vmcnt(4)")
        if k+1<8: reads(k+1); a("s_waitcnt lgkmcnt(4)")
        else: a("s_waitcnt lgkmcnt(0)")
        for mt in range(2):
            for u in range(2):
                c=ACC+16*(2*mt+u)
                a(f"v_mfma_f32_32x32x16_bf16 {vr(c,16)}, {vr(fb+4*u,4)}, {vr(OB+32*mt+4*k,4)}, {vr(c,16)}")
    reduce4(a,ACC,T,16384)
    a("s_waitcnt vmcnt(0)")
    for p in range(8):
        a(f"v_cvt_pk_bf16_f32 v{T+2*p}, v{T+2*p}, v{T+2*p+1}")
        a(f"v_and_b32 v{T+2*p+1}, 0xffff0000, v{T+2*p}")
        a(f"v_lshlrev_b32 v{T+2*p}, 16, v{T+2*p}")
        a(f"v_lshlrev_b32 v4, 16, v{XR+p}")
        a(f"v_and_b32 v5, 0xffff0000, v{XR+p}")
        a(f"v_add_f32 v{T+2*p}, v{T+2*p}, v4")
        a(f"v_add_f32 v{T+2*p+1}, v{T+2*p+1}, v5")
        a(f"v_cvt_pk_bf16_f32 v{T+32+p}, v{T+2*p}, v{T+2*p+1}")
    a(f"""s_mul_i32 s33, s32, 28
s_lshl_b32 s34, s21, 2
s_add_u32 s33, s33, s34
s_lshl_b32 s34, s31, 1
s_add_u32 s33, s33, s34
s_lshl_b32 s33, s33, 10
s_add_u32 s33, s33, {WS_H}
buffer_store_dwordx4 {vr(T+32,4)}, v12, s[{SWS}:{SWS+3}], s33 offen
buffer_store_dwordx4 {vr(T+36,4)}, v12, s[{SWS}:{SWS+3}], s33 offen offset:1024
L_wo_end:
s_endpgm""")
    return a.finish(168,64,verbose=True), ("wo",224,256,65536)

def k4():
    a=Asm("ff1")
    SB,SW,SWS=8,12,16
    WT=28672
    CS=4*WT; B1=CS+512; STAT=B1+512; LDS=STAT+1024
    a("s_cmp_ge_u32 s2, 224\ns_cbranch_scc1 L_ff1_end")
    load_srds(a,[("b1",SB),("w1",SW),("ws",SWS)])
    decode_4x7(a,"A")
    HB=16; ACC=128; FR=[192,208]; SUM=[224,225]; SSQ=[226,227]; CSV=[228,229,230,231]; ON=232
    a(f"""v_lshlrev_b32 v3, 3, v0
v_add_u32 v3, {CS}, v3
v_mov_b32 v4, 0
v_mov_b32 v5, 0
ds_write_b64 v3, v[4:5]
s_lshl_b32 s24, s22, 4
v_lshrrev_b32 v3, 2, v2
v_add_u32 v3, s24, v3
v_mul_u32_u24 v3, 3584, v3
v_and_b32 v4, 3, v2
v_lshl_add_u32 v8, v4, 4, v3
s_lshl_b32 s25, s21, 8
s_lshl_b32 s26, s22, 10          ; w*1024
s_lshl_b32 s31, s20, 2
s_add_u32 s31, s31, s22          ; t
s_mul_i32 s28, s31, 28672
s_add_u32 s28, s28, {WS_H}
v_and_b32 v3, 127, v0
v_lshlrev_b32 v9, 1, v3
s_waitcnt lgkmcnt(0)
buffer_load_ushort v7, v9, s[{SB}:{SB+3}], s25 offen""")
    for j in range(7):
        for u in range(4):
            a(f"s_add_u32 m0, s26, {u*WT+j*4096}")
            a(f"s_add_u32 s29, s25, {64*j*3584+64*u}")
            a(f"buffer_load_dwordx4 v8, s[{SW}:{SW+3}], s29 offen lds")
        a(f"s_add_u32 s29, s28, {j*4096}")
        for ks in range(4):
            a(f"buffer_load_dwordx4 {vr(HB+16*j+4*ks,4)}, v12, s[{SWS}:{SWS+3}], s29 offen offset:{ks*1024}")
    tr_base(a,10,4,5)
    a(f"v_add_u32 v13, {2*WT}, v10")
    a(f"v_mov_b32 v{ON}, {hex(ONES)}")
    for r in list(range(ACC,ACC+64))+list(range(224,232)): a(f"v_mov_b32 v{r}, 0")
    a(f"""s_waitcnt vmcnt(56)
s_barrier
v_lshlrev_b32 v7, 16, v7
v_lshlrev_b32 v9, 1, v9
v_add_u32 v9, {B1}, v9
ds_write_b32 v9, v7
s_waitcnt lgkmcnt(0)""")
    def reads(s):
        j,ks=divmod(s,4); fb=FR[s&1]
        if ks==0:
            a(f"s_waitcnt vmcnt({8*(6-j)})\ns_barrier")
        for u in range(4):
            for i in range(2):
                a(f"ds_read_b64_tr_b16 {vr(fb+4*u+2*i,2)}, v{10 if u<2 else 13} offset:{(u&1)*WT+s*1024+i*512}")
    reads(0)
    for s in range(28):
        fb=FR[s&1]; hb=HB+4*s
        if s+1<28: reads(s+1); a("s_waitcnt lgkmcnt(8)")
        else: a("s_waitcnt lgkmcnt(0)")
        for u in range(4):
            a(f"v_mfma_f32_32x32x16_bf16 {vr(ACC+16*u,16)}, {vr(fb+4*u,4)}, {vr(hb,4)}, {vr(ACC+16*u,16)}")
            if u==0:
                for i in range(4): a(f"v_dot2_f32_bf16 v{SUM[i&1]}, v{hb+i}, v{ON}, v{SUM[i&1]}")
            if u==1:
                for i in range(4): a(f"v_dot2_f32_bf16 v{SSQ[i&1]}, v{hb+i}, v{hb+i}, v{SSQ[i&1]}")
        L=a.label("cs")
        a(f"s_cmp_lg_u32 s22, {s&3}\ns_cbranch_scc1 {L}")
        for i in range(4):
            for u in range(4):
                a(f"v_dot2_f32_bf16 v{CSV[u]}, v{fb+4*u+i}, v{ON}, v{CSV[u]}")
        a(f"{L}:")
    a(f"""v_add_f32 v{SUM[0]}, v{SUM[0]}, v{SUM[1]}
v_add_f32 v{SSQ[0]}, v{SSQ[0]}, v{SSQ[1]}
v_and_b32 v3, 31, v2
s_lshl_b32 s29, s22, 8
v_lshl_add_u32 v4, v3, 3, s29
v_add_u32 v4, {STAT}, v4
ds_add_f32 v4, v{SUM[0]}
ds_add_f32 v4, v{SSQ[0]} offset:4
v_lshlrev_b32 v5, 2, v3
v_add_u32 v5, {CS}, v5""")
    for u in range(4): a(f"ds_add_f32 v5, v{CSV[u]} offset:{u*128}")
    a("s_waitcnt lgkmcnt(0)\ns_barrier")
    a(f"ds_read_b64 v[14:15], v4")
    a(f"v_lshlrev_b32 v13, 4, v11\nv_add_u32 v13, {CS}, v13")
    a("s_waitcnt lgkmcnt(0)")
    ln_stats(a,14,15,6,7,8,9)
    a(f"""s_mul_i32 s33, s31, 112
s_lshl_b32 s34, s21, 3
s_add_u32 s33, s33, s34
s_lshl_b32 s33, s33, 10
s_add_u32 s33, s33, {WS_R}""")
    for u in range(4):
        cb_=16+32*(u&1)
        for g in range(4):
            a(f"ds_read_b128 {vr(cb_+4*g,4)}, v13 offset:{u*128+g*32}")
            a(f"ds_read_b128 {vr(cb_+16+4*g,4)}, v13 offset:{512+u*128+g*32}")
        a("s_waitcnt lgkmcnt(0)")
        c=ACC+16*u
        for r in range(16):
            a(f"v_fma_f32 v{c+r}, v{c+r}, v6, v{cb_+16+r}")
            a(f"v_fma_f32 v{c+r}, -v{cb_+r}, v7, v{c+r}")
            a(f"v_max_f32 v{c+r}, 0, v{c+r}")
            a(f"v_mul_f32 v{c+r}, v{c+r}, v{c+r}")
        for p in range(8): a(f"v_cvt_pk_bf16_f32 v{c+p}, v{c+2*p}, v{c+2*p+1}")
        a(f"buffer_store_dwordx4 {vr(c,4)}, v12, s[{SWS}:{SWS+3}], s33 offen offset:{(u&1)*2048}")
        a(f"buffer_store_dwordx4 {vr(c+4,4)}, v12, s[{SWS}:{SWS+3}], s33 offen offset:{(u&1)*2048+1024}")
        if u==1: a("s_add_u32 s33, s33, 4096")
    a("L_ff1_end:\ns_endpgm")
    return a.finish(240,64,verbose=True), ("ff1",224,256,LDS)

def k5():
    a=Asm("ff2")
    SB,SW,SWS,SO=8,12,16,36
    a("s_cmp_ge_u32 s2, 224\ns_cbranch_scc1 L_ff2_end")
    load_srds(a,[("b2",SB),("w2",SW),("ws",SWS),("out",SO)])
    decode_4x7(a,"B")
    RB=16; ACC=144; FR=[208,216]; XR=224; T=16
    a(f"""s_mul_i32 s24, s22, 448
v_lshrrev_b32 v3, 2, v2
v_add_u32 v3, s24, v3
v_mul_u32_u24 v3, 896, v3
v_and_b32 v4, 3, v2
v_lshl_add_u32 v8, v4, 4, v3
s_lshl_b32 s25, s21, 7
s_lshl_b32 s26, s22, 15          ; w*32768
s_mul_i32 s28, s20, {2*114688}
s_mul_i32 s29, s22, 28672
s_add_u32 s28, s28, s29
s_add_u32 s28, s28, {WS_R}
s_lshr_b32 s30, s22, 1
s_and_b32 s31, s22, 1
s_lshl_b32 s32, s20, 1
s_add_u32 s32, s32, s30          ; t
s_mul_i32 s33, s32, 28
s_lshl_b32 s34, s21, 2
s_add_u32 s33, s33, s34
s_lshl_b32 s34, s31, 1
s_add_u32 s33, s33, s34
s_lshl_b32 s33, s33, 10
s_add_u32 s33, s33, {WS_H}
s_lshl_b32 s34, s31, 6
s_add_u32 s34, s34, s25
v_lshlrev_b32 v9, 3, v11
s_waitcnt lgkmcnt(0)
buffer_load_dwordx4 {vr(XR,4)}, v12, s[{SWS}:{SWS+3}], s33 offen
buffer_load_dwordx4 {vr(XR+4,4)}, v12, s[{SWS}:{SWS+3}], s33 offen offset:1024""")
    for g in range(4):
        a(f"buffer_load_dwordx2 {vr(XR+8+2*g,2)}, v9, s[{SB}:{SB+3}], s34 offen offset:{16*g}")
    def issue(j):
        sl=j%4
        for i in range(4):
            for u in range(2):
                a(f"s_add_u32 m0, s26, {sl*8192+u*4096+i*1024}")
                a(f"s_add_u32 s29, s25, {(64*j+16*i)*896+64*u}")
                a(f"buffer_load_dwordx4 v8, s[{SW}:{SW+3}], s29 offen lds")
        for mt in range(2):
            a(f"s_add_u32 s29, s28, {mt*114688+j*4096}")
            for ks in range(4):
                a(f"buffer_load_dwordx4 {vr(RB+32*sl+16*mt+4*ks,4)}, v12, s[{SWS}:{SWS+3}], s29 offen offset:{ks*1024}")
    issue(0); issue(1); issue(2)
    tr_base(a,10,4,5)
    a("v_add_u32 v10, s26, v10")
    for r in range(64): a(f"v_mov_b32 v{ACC+r}, 0")
    def reads(s):
        j,ks=divmod(s,4); fb=FR[s&1]
        if ks==0:
            a(f"s_waitcnt vmcnt({16*min(2,6-j)})")
        for u in range(2):
            for i in range(2):
                a(f"ds_read_b64_tr_b16 {vr(fb+4*u+2*i,2)}, v10 offset:{(j%4)*8192+u*4096+ks*1024+i*512}")
    reads(0)
    for s in range(28):
        j,ks=divmod(s,4); fb=FR[s&1]
        if s+1<28: reads(s+1); a("s_waitcnt lgkmcnt(4)")
        else: a("s_waitcnt lgkmcnt(0)")
        for mt in range(2):
            for u in range(2):
                c=ACC+16*(2*mt+u)
                a(f"v_mfma_f32_32x32x16_bf16 {vr(c,16)}, {vr(fb+4*u,4)}, {vr(RB+32*(j%4)+16*mt+4*ks,4)}, {vr(c,16)}")
        if ks==0 and j+3<7: issue(j+3)
    reduce4(a,ACC,T,32768)
    a(f"""v_and_b32 v3, 31, v2
s_lshl_b32 s33, s32, 5
v_add_u32 v3, s33, v3
v_mul_u32_u24 v3, 896, v3
v_lshl_add_u32 v3, v11, 3, v3""")
    for p in range(8):
        for w,(sh) in enumerate(("v_lshlrev_b32 v{d}, 16, v{s}","v_and_b32 v{d}, 0xffff0000, v{s}")):
            a(sh.format(d=4,s=XR+p)); a(sh.format(d=5,s=XR+8+p))
            a(f"v_add_f32 v{T+2*p+w}, v{T+2*p+w}, v5")
            a(f"v_add_f32 v{T+2*p+w}, v{T+2*p+w}, v4")
        a(f"v_cvt_pk_bf16_f32 v{T+32+p}, v{T+2*p}, v{T+2*p+1}")
    for g in range(4):
        a(f"buffer_store_dwordx2 {vr(T+32+2*g,2)}, v3, s[{SO}:{SO+3}], s34 offen offset:{16*g}")
    a("L_ff2_end:\ns_endpgm")
    return a.finish(240,64,verbose=True), ("ff2",224,256,131072)

if __name__=="__main__":
    hdr=open("sequential_preLN__softmax_full_mha__dense_activation_squared_relu__prompt.s.ref").read().split("; Override")[0]
    ks=[k1(),k2(),k3(),k4(),k5()]
    open("k1.s","w").write(build_file(hdr,[l for _,l in ks],[k for k,_ in ks]))
```
